```python
import torch

def _softmax(x, axis=-1):
    return torch.softmax(x, dim=axis)

def _gelu(x):
    return torch.nn.functional.gelu(x, approximate='tanh')

def _silu(x):
    return torch.nn.functional.silu(x)

def _sigmoid(x):
    return torch.sigmoid(x)

def _layernorm(x, axis=-1, eps=1e-05):
    m = x.mean(dim=axis, keepdim=True)
    v = x.var(dim=axis, keepdim=True, unbiased=False)
    return (x - m) / torch.sqrt(v + eps)

def _scatter_add(tgt, idx, src, axis=0):
    return tgt.clone().index_add_(axis, idx, src)

def _segment_sum(src, seg, n):
    out = torch.zeros((n,) + src.shape[1:], dtype=src.dtype)
    return out.index_add_(0, seg, src)

def _pad(x, pw):
    flat = tuple((v for pair in reversed(pw) for v in pair))
    return torch.nn.functional.pad(x, flat)
kernel_name = 'sequential_preLN__memory_aug_recurrent_mem_tr__glu_gated_bilinear__prompt'

def setup_inputs():

    _w = lambda a: (lambda t: t.to(torch.bfloat16) if t.is_floating_point() else t)(torch.as_tensor(a))

    def _A_setup():
        B, S, Dm = (1, 2048, 640)
        H, Dh = (32, 192)
        M, seg = (8, 32)
        seg = min(seg, S)
        S = S // seg * seg
        return {'x': _w((lambda *s: torch.randn(*s, dtype=torch.bfloat16) * 0.05)(B, S, Dm)), 'mem0': _w((lambda *s: torch.randn(*s, dtype=torch.bfloat16) * 0.2)(B, M, Dm)), 'Wq': _w((lambda *s: torch.randn(*s, dtype=torch.bfloat16) * 1.6)(Dm, H, Dh) * Dm ** (-0.5)), 'Wk': _w((lambda *s: torch.randn(*s, dtype=torch.bfloat16) * 1.6)(Dm, H, Dh) * Dm ** (-0.5)), 'Wv': _w((lambda *s: torch.randn(*s, dtype=torch.bfloat16) * 0.2)(Dm, H, Dh) * Dm ** (-0.5)), 'Wo': _w((lambda *s: torch.randn(*s, dtype=torch.bfloat16) * 0.2)(H, Dh, Dm) * (H * Dh) ** (-0.5)), 'seg_len': seg}
    _A_in = _A_setup()

    def _B_setup():
        B, S, D, F = (1, 2048, 640, 1536)
        return {'x': _w((lambda *s: torch.randn(*s, dtype=torch.bfloat16) * 0.05)(B, S, D)), 'w_gate': _w((lambda *s: torch.randn(*s, dtype=torch.bfloat16) * 0.2)(D, F) * D ** (-0.5)), 'w_up': _w((lambda *s: torch.randn(*s, dtype=torch.bfloat16) * 0.2)(D, F) * D ** (-0.5)), 'w_down': _w((lambda *s: torch.randn(*s, dtype=torch.bfloat16) * 0.2)(F, D) * F ** (-0.5))}
    _B_in = _B_setup()
    return {'A_x': _A_in['x'], 'A_mem0': _A_in['mem0'], 'A_Wq': _A_in['Wq'], 'A_Wk': _A_in['Wk'], 'A_Wv': _A_in['Wv'], 'A_Wo': _A_in['Wo'], 'A_seg_len': _A_in['seg_len'], 'B_x': _B_in['x'], 'B_w_gate': _B_in['w_gate'], 'B_w_up': _B_in['w_up'], 'B_w_down': _B_in['w_down']}

def reference(A_x, A_mem0, A_Wq, A_Wk, A_Wv, A_Wo, A_seg_len, B_x, B_w_gate, B_w_up, B_w_down):

    def _A_ref(x, mem0, Wq, Wk, Wv, Wo, seg_len):
        B, S, Dm = x.shape
        H, Dh = (Wq.shape[1], Wq.shape[2])
        M = mem0.shape[1]
        scale = Dh ** (-0.5)
        n_seg = S // seg_len
        L = M + seg_len
        idx = torch.arange(L)
        mask = (idx[:, None] < M) | (idx[:, None] >= idx[None, :])
        mem = mem0
        outs = []
        for s in range(n_seg):
            xs = x[:, s * seg_len:(s + 1) * seg_len, :].clone()
            h = torch.concatenate([mem, xs], axis=1)
            q = torch.einsum('btd,dhe->bhte', h, Wq)
            k = torch.einsum('btd,dhe->bhte', h, Wk)
            v = torch.einsum('btd,dhe->bhte', h, Wv)
            scores = torch.einsum('bhqe,bhke->bhqk', q, k) * scale
            scores = torch.where(mask[None, None], scores, -1000000000.0)
            p = _softmax(scores, axis=-1)
            o = torch.einsum('bhqk,bhke->bhqe', p, v)
            o = torch.einsum('bhte,hed->btd', o, Wo)
            mem = o[:, :M, :].clone()
            outs.append(o[:, M:, :])
        return torch.concatenate(outs, axis=1)

    def _B_ref(x, w_gate, w_up, w_down):
        g = torch.einsum('bsd,df->bsf', x, w_gate)
        u = torch.einsum('bsd,df->bsf', x, w_up)
        h = g * u
        return torch.einsum('bsf,fd->bsd', h, w_down)
    x = A_x
    h = x + _A_ref(_layernorm(x, axis=-1), A_mem0, A_Wq, A_Wk, A_Wv, A_Wo, A_seg_len)
    h2 = h + _B_ref(_layernorm(h, axis=-1), B_w_gate, B_w_up, B_w_down)
    return h2
```

```python
from common import *
from xattn import bf16_round, SCALE_HEX, LOG2E_HEX

CHAIN_GRID = 256
CHAIN_BLOCK = 320
NREP = 8
H1 = 0
H1S = 9216
H2 = 0x100000
H3 = 0x200000
MROW = 1296
QROW = 400
L_MEM = 0
L_Q = 10368
L_K = L_Q + 4800
VROW = 112
L_V = L_K + 19200
L_X0 = 56320
L_X1 = L_X0 + 40960
CHAIN_LDS = L_X1 + 40960
XB = QB
XB_SIZE = 64 * 32 * 36864
import os
XRING = int(os.environ.get("XRING", "4"))
XSC1 = " sc1" if os.environ.get("XSC1", "1") == "1" else ""
XNOST = int(os.environ.get("XNOST", "0"))
XNOXP = int(os.environ.get("XNOXP", "0"))
XNODMA = int(os.environ.get("XNODMA", "0"))
H0 = 0x300000
SPIN_MAX = 1 << 22
INSTR = False
SLEEP = 0


def gen_chain(a):
    e = a.e
    marks = []

    def mark(name):
        if not INSTR:
            return
        i = len(marks)
        marks.append(name)
        e("s_cmp_lg_u32 s60, 10")
        e("s_cbranch_scc1 L_mark%d" % i)
        e("s_memrealtime s[98:99]")
        e("s_waitcnt lgkmcnt(0)")
        e("s_mov_b32 s%d, s98" % (76 + i))
        a.lab("L_mark%d" % i)

    name = "chain_kernel"
    a.begin(name)
    e("s_cmp_ge_u32 s2, %d" % CHAIN_GRID)
    e("s_cbranch_scc1 L_chain_end")
    e("s_load_dwordx2 s[4:5], s[0:1], %d" % KA_WS)
    e("s_load_dwordx2 s[6:7], s[0:1], %d" % KA_MEM0)
    e("s_and_b32 s20, s2, 7")
    e("s_lshl_b32 s20, s20, 2")
    e("s_bfe_u32 s21, s2, 0x20003")
    e("s_add_u32 s20, s20, s21")
    e("s_lshr_b32 s21, s2, 5")
    e("s_mul_i32 s57, s20, 192")
    e("s_mul_i32 s23, s21, 24")
    e("s_add_u32 s22, s57, s23")
    e("v_lshrrev_b32 v4, 6, v0")
    e("s_nop 0")
    e("v_readfirstlane_b32 s24, v4")
    e("s_waitcnt lgkmcnt(0)")
    a.srd(8, 4, 5, WQKVT, 18432 * 1280)
    a.srd(12, 4, 5, WOT, 640 * 12288)
    a.srd(16, 6, 7, 0, 8 * 1280)
    a.srd(28, 4, 5, XB, XB_SIZE)
    a.srd(32, 4, 5, XN, 2048 * 1280)
    a.srd(40, 4, 5, OX, 2048 * 12288)
    a.srd(44, 4, 5, HOP, HOP_SIZE)
    e("v_and_b32 v1, 15, v0")
    e("v_bfe_u32 v2, v0, 4, 2")
    e("v_and_b32 v3, 63, v0")
    e("v_and_b32 v10, 7, v1")
    e("v_and_b32 v11, 1, v2")
    e("v_cmp_gt_u32 s[62:63], 8, v1")
    e("v_cmp_gt_u32 s[64:65], 2, v2")
    e("s_lshl_b32 s25, s24, 4")
    e("v_add_u32 v5, s25, v1")
    e("v_mul_u32_u24 v6, 43, v5")
    e("v_lshrrev_b32 v6, 10, v6")
    e("v_mul_u32_u24 v7, 24, v6")
    e("v_sub_u32 v7, v5, v7")
    e("v_mul_u32_u24 v6, 6144, v6")
    e("v_add_u32 v6, v6, v7")
    e("v_add_u32 v6, s22, v6")
    e("s_mov_b32 s26, 1280")
    e("v_mul_lo_u32 v6, v6, s26")
    e("v_lshl_add_u32 v6, v2, 4, v6")
    e("v_cmp_lt_u32 vcc, 71, v5")
    e("v_mov_b32 v7, 0x7fffff00")
    e("s_nop 1")
    e("v_cndmask_b32 v6, v6, v7, vcc")
    for ks in range(20):
        e("buffer_load_dwordx4 a[%d:%d], v6, s[8:11], 0 offen offset:%d" % (4 * ks, 4 * ks + 3, ks * 64))
    e("s_mul_i32 s27, s21, 80")
    e("s_add_u32 s27, s27, s25")
    e("v_add_u32 v5, s27, v1")
    e("s_mov_b32 s26, 12288")
    e("v_mul_lo_u32 v5, v5, s26")
    e("s_lshl_b32 s27, s57, 1")
    e("v_add_u32 v5, s27, v5")
    e("v_lshl_add_u32 v5, v2, 3, v5")
    for i in range(6):
        e("buffer_load_dwordx2 a[%d:%d], v5, s[12:15], 0 offen offset:%d" % (80 + 4 * i, 81 + 4 * i, 64 * i))
        e("buffer_load_dwordx2 a[%d:%d], v5, s[12:15], 0 offen offset:%d" % (82 + 4 * i, 83 + 4 * i, 64 * i + 32))
    for i in range(2):
        e("v_add_u32 v5, %d, v0" % (320 * i))
        e("v_mul_u32_u24 v6, 205, v5")
        e("v_lshrrev_b32 v6, 14, v6")
        e("v_mul_u32_u24 v7, 80, v6")
        e("v_sub_u32 v7, v5, v7")
        e("v_mul_u32_u24 v%d, %d, v6" % (44 + i, MROW))
        e("v_lshl_add_u32 v%d, v7, 4, v%d" % (44 + i, 44 + i))
    e("v_lshlrev_b32 v17, 4, v0")
    for i in range(2):
        e("v_add_u32 v5, %d, v0" % (320 * i))
        e("v_and_b32 v6, 3, v5")
        e("v_lshrrev_b32 v7, 2, v5")
        e("v_mul_u32_u24 v%d, %d, v6" % (42 + i, 2 * MROW))
        e("v_lshl_add_u32 v%d, v7, 3, v%d" % (42 + i, 42 + i))
    e("buffer_load_dwordx4 v[20:23], v17, s[16:19], 0 offen")
    e("s_movk_i32 s27, 5120")
    e("buffer_load_dwordx4 v[24:27], v17, s[16:19], s27 offen")
    e("s_waitcnt vmcnt(0)")
    e("ds_write_b128 v44, v[20:23] offset:%d" % L_MEM)
    e("ds_write_b128 v45, v[24:27] offset:%d" % L_MEM)
    e("v_mul_u32_u24 v5, %d, v10" % MROW)
    e("v_lshl_add_u32 v5, v2, 4, v5")
    e("v_lshl_add_u32 v6, v2, 2, s25")
    e("v_cmp_lt_u32 vcc, 23, v6")
    e("v_subrev_u32 v7, 24, v6")
    e("s_nop 0")
    e("v_cndmask_b32 v7, v6, v7, vcc")
    e("v_cndmask_b32 v8, 0, 1, vcc")
    e("v_add_u32 v7, s23, v7")
    e("v_lshlrev_b32 v22, 1, v7")
    e("v_mul_u32_u24 v9, 384, v1")
    e("v_add_u32 v22, v22, v9")
    e("v_mul_u32_u24 v9, 3072, v8")
    e("v_add_u32 v22, v22, v9")
    e("v_mul_lo_u32 v34, v1, s26")
    e("v_add_u32 v9, s57, v7")
    e("v_lshl_add_u32 v34, v9, 1, v34")
    e("v_mov_b32 v35, v8")
    e("s_sub_u32 s27, s25, 48")
    e("v_add_u32 v6, s27, v1")
    e("v_add_u32 v7, s23, v6")
    e("v_lshlrev_b32 v23, 4, v7")
    e("v_lshl_add_u32 v23, v2, 3, v23")
    e("v_add_u32 v36, s57, v7")
    e("v_lshlrev_b32 v36, 4, v36")
    e("v_lshl_add_u32 v36, v2, 3, v36")
    e("v_add_u32 v23, 6144, v23")
    e("v_mov_b32 v37, v6")
    e("s_mul_i32 s51, s20, %d" % H1S)
    for i in range(2):
        e("v_add_u32 v6, %d, v0" % (320 * i))
        e("v_mul_u32_u24 v7, 2731, v6")
        e("v_lshrrev_b32 v7, 16, v7")
        e("v_mul_u32_u24 v8, 24, v7")
        e("v_sub_u32 v8, v6, v8")
        e("v_and_b32 v9, 7, v7")
        e("v_lshrrev_b32 v7, 3, v7")
        e("v_mul_u32_u24 v%d, %d, v9" % (46 + i, QROW))
        e("v_lshl_add_u32 v%d, v8, 4, v%d" % (46 + i, 46 + i))
        e("v_mul_u32_u24 v7, 4800, v7")
        e("v_add_u32 v%d, v%d, v7" % (46 + i, 46 + i))
        e("v_add_u32 v%d, %d, v%d" % (46 + i, L_Q, 46 + i))
        e("v_subrev_u32 v7, 384, v6")
        e("v_mul_u32_u24 v7, %d, v7" % VROW)
        e("v_add_u32 v7, %d, v7" % L_V)
        e("v_cmp_lt_u32 vcc, 383, v6")
        e("s_nop 1")
        e("v_cndmask_b32 v%d, v%d, v7, vcc" % (46 + i, 46 + i))
    for i in range(3):
        e("v_add_u32 v6, %d, v0" % (320 * i))
        e("v_mul_u32_u24 v7, 683, v6")
        e("v_lshrrev_b32 v7, 16, v7")
        e("v_mul_u32_u24 v8, 96, v7")
        e("v_sub_u32 v8, v6, v8")
        e("v_mul_u32_u24 v%d, 4608, v7" % (12 + i))
        e("v_lshl_add_u32 v%d, v8, 4, v%d" % (12 + i, 12 + i))
        e("v_add_u32 v%d, 1536, v%d" % (12 + i, 12 + i))
        e("v_mul_u32_u24 v9, 86, v8")
        e("v_lshrrev_b32 v9, 8, v9")
        e("v_mul_u32_u24 v%d, %d, v9" % (28 + i, QROW))
        e("v_mul_u32_u24 v9, 3, v9")
        e("v_sub_u32 v9, v8, v9")
        e("v_lshl_add_u32 v%d, v9, 4, v%d" % (28 + i, 28 + i))
        e("v_mul_u32_u24 v9, 48, v7")
        e("v_add_u32 v%d, v%d, v9" % (28 + i, 28 + i))
        e("v_add_u32 v%d, %d, v%d" % (28 + i, L_K + 8 * QROW, 28 + i))
        e("v_lshrrev_b32 v7, 2, v6")
        e("v_and_b32 v8, 3, v6")
        e("v_mul_u32_u24 v%d, %d, v7" % (38 + i, VROW))
        e("v_lshl_add_u32 v%d, v8, 4, v%d" % (38 + i, 38 + i))
        e("v_add_u32 v%d, %d, v%d" % (38 + i, L_V + 16, 38 + i))
    e("v_cmp_gt_u32 vcc, 128, v0")
    e("s_mov_b64 s[48:49], vcc")
    e("v_cmp_gt_u32 vcc, 12, v1")
    e("s_nop 1")
    e("v_cndmask_b32 v19, 0, v1, vcc")
    e("v_mul_u32_u24 v19, %d, v19" % QROW)
    e("v_lshl_add_u32 v19, v2, 4, v19")
    e("v_mul_u32_u24 v7, 43, v0")
    e("v_lshrrev_b32 v7, 9, v7")
    e("v_mul_u32_u24 v8, 12, v7")
    e("v_sub_u32 v8, v0, v8")
    e("s_lshl_b32 s27, s21, 2")
    e("s_mul_i32 s53, s21, 192")
    e("v_mul_u32_u24 v34, 4608, v7")
    e("v_lshl_add_u32 v34, v8, 4, v34")
    e("v_add_u32 v34, s53, v34")
    e("v_mul_u32_u24 v9, 86, v8")
    e("v_lshrrev_b32 v9, 8, v9")
    e("v_mul_u32_u24 v35, %d, v9" % QROW)
    e("v_mul_u32_u24 v9, 3, v9")
    e("v_sub_u32 v9, v8, v9")
    e("v_lshl_add_u32 v35, v9, 4, v35")
    e("v_mul_u32_u24 v9, 48, v7")
    e("v_add_u32 v35, v35, v9")
    e("v_add_u32 v35, %d, v35" % (L_Q + 8 * QROW))
    e("v_cmp_gt_u32 vcc, 96, v0")
    e("s_mov_b64 s[100:101], vcc")
    e("v_add_u32 v36, s27, v1")
    e("v_subrev_u32 v36, 8, v36")
    e("v_mul_lo_u32 v36, v36, s26")
    e("v_lshl_add_u32 v36, v2, 3, v36")
    e("v_cmp_lt_u32 vcc, 7, v1")
    e("v_cmp_gt_u32 s[74:75], 12, v1")
    e("s_and_b64 s[12:13], vcc, s[74:75]")
    e("v_lshlrev_b32 v7, 2, v2")
    e("v_add_u32 v8, s27, v1")
    e("v_sub_u32 v8, v8, v7")
    e("v_mov_b32 v7, 1000")
    e("v_cndmask_b32 v8, v7, v8, vcc")
    for t in range(3):
        for r in range(4):
            sr = 76 + 2 * (4 * t + r)
            e("v_cmp_lt_i32 s[%d:%d], v8, %d" % (sr, sr + 1, 16 * t + r))
            if t == 2:
                e("s_orn2_b64 s[%d:%d], s[%d:%d], s[64:65]" % (sr, sr + 1, sr, sr + 1))
    e("v_mul_u32_u24 v15, %d, v1" % QROW)
    e("v_lshl_add_u32 v15, v2, 4, v15")
    e("v_mul_u32_u24 v20, %d, v1" % VROW)
    e("v_lshl_add_u32 v20, v2, 3, v20")
    e("v_mov_b32 v6, 0")
    e("v_mov_b32 v7, 0")
    e("v_mov_b32 v8, 0")
    e("v_mov_b32 v9, 0")
    e("v_cmp_gt_u32 vcc, 200, v0")
    e("s_and_saveexec_b64 s[72:73], vcc")
    e("ds_write_b128 v17, v[6:9] offset:%d" % (L_K + 40 * QROW))
    e("s_mov_b64 exec, s[72:73]")
    e("v_cmp_gt_u32 vcc, 192, v0")
    e("s_and_saveexec_b64 s[72:73], vcc")
    e("v_mul_u32_u24 v16, %d, v0" % VROW)
    e("ds_write_b128 v16, v[6:9] offset:%d" % (L_V + 80))
    e("s_mov_b64 exec, s[72:73]")
    e("v_xor_b32 v31, 16, v3")
    e("v_lshlrev_b32 v31, 2, v31")
    e("v_xor_b32 v32, 32, v3")
    e("v_lshlrev_b32 v32, 2, v32")
    e("s_mul_i32 s27, s21, 20")
    e("s_lshl_b32 s53, s24, 2")
    e("s_add_u32 s27, s27, s53")
    e("v_add_u32 v33, s27, v2")
    e("v_lshlrev_b32 v33, 11, v33")
    e("v_lshl_add_u32 v33, v1, 3, v33")
    e("s_lshl_b32 s53, s20, 6")
    e("s_add_u32 s53, s53, 0x%x" % H2)
    e("s_lshl_b32 s52, s2, 11")
    e("s_add_u32 s52, s52, 0x%x" % H2)
    e("v_lshlrev_b32 v18, 4, v3")
    for d in range(4):
        e("v_mov_b32 v%d, 0" % (24 + d))
    for d in range(4):
        e("v_cmp_eq_u32 vcc, %d, v1" % (2 * d))
        e("v_mov_b32 v6, 0x3f80")
        e("s_nop 0")
        e("v_cndmask_b32 v%d, v%d, v6, vcc" % (24 + d, 24 + d))
        e("v_cmp_eq_u32 vcc, %d, v1" % (2 * d + 1))
        e("v_mov_b32 v6, 0x3f800000")
        e("s_nop 0")
        e("v_cndmask_b32 v%d, v%d, v6, vcc" % (24 + d, 24 + d))
    e("v_lshlrev_b32 v41, 1, v1")
    e("v_add_u32 v41, v41, v2")
    e("v_lshlrev_b32 v41, 3, v41")
    e("s_lshl_b32 s54, s2, 6")
    e("s_add_u32 s54, s54, 0x%x" % H3)
    e("s_and_b32 s55, s2, %d" % (NREP - 1))
    e("s_mul_i32 s55, s55, 10240")
    e("s_add_u32 s55, s55, 0x%x" % H3)
    e("s_add_u32 s56, s55, 5120")
    e("s_add_u32 s50, s51, 5120")
    e("s_lshl_b32 s58, s57, 1")
    e("s_lshl_b32 s59, s57, 6")
    e("v_cmp_gt_u32 s[62:63], 8, v1")
    e("v_cmp_gt_u32 s[64:65], 2, v2")
    e("v_cmp_gt_u32 vcc, 256, v0")
    e("s_mov_b64 s[66:67], vcc")
    e("s_mov_b32 s60, 0")
    e("s_mov_b32 s8, %s" % LOG2E_HEX)
    e("s_mov_b32 s10, %s" % SCALE_HEX)
    e("s_mov_b32 s11, %s" % SCALE_HEX)

    vX, vF, vAcc, vT = 50, 74, 114, 130

    def prefetch_x():
        for i in range(3):
            if i == 2:
                e("s_mov_b64 exec, s[48:49]")
            e("buffer_load_dwordx4 v[%d:%d], v%d, s[28:31], s61 offen%s" % (vX + 4 * i, vX + 4 * i + 3, 12 + i, XSC1))
            e("buffer_load_dwordx4 v[%d:%d], v%d, s[28:31], s61 offen offset:1536%s" % (vX + 12 + 4 * i, vX + 12 + 4 * i + 3, 12 + i, XSC1))
        e("s_mov_b64 exec, s[100:101]")
        e("buffer_load_dwordx4 v[%d:%d], v34, s[28:31], s61 offen%s" % (vT + 18, vT + 21, XSC1))
        e("s_mov_b64 exec, -1")

    def slot_off(dst, seg):
        if XRING:
            e("s_and_b32 s%d, s%d, %d" % (dst, seg, XRING - 1))
            e("s_mul_i32 s%d, s%d, %d" % (dst, dst, 32 * 36864))
        else:
            e("s_mul_i32 s%d, s%d, %d" % (dst, seg, 32 * 36864))
        e("s_add_u32 s%d, s%d, s14" % (dst, dst))

    def dma_x():
        for n in range(8):
            e("s_add_u32 s75, s72, %d" % (5120 * n))
            e("s_mov_b32 m0, s75")
            e("s_add_u32 s75, s71, %d" % (5120 * n))
            e("buffer_load_dwordx4 v%d, s[32:35], s75 offen lds" % (vDe if n % 2 == 0 else vDo))

    def xp_phase(tag):
        e("s_cmp_ge_u32 s24, 3")
        e("s_cbranch_scc1 L_xp_sw%s" % tag)
        for swapped in (False, True):
            if swapped:
                a.lab("L_xp_sw%s" % tag)

            def rdx(i):
                ks, t = i >> 1, i & 1
                b = vF + 4 * (i % 10)
                e("ds_read_b128 v[%d:%d], v%d offset:%d" % (b, b + 3, vXe if ks % 2 == 0 else vXo, 128 * (ks >> 1) + 20480 * t))
            for i in range(10):
                rdx(i)
            for i in range(40):
                ks, t = i >> 1, i & 1
                b = vF + 4 * (i % 10)
                e("s_waitcnt lgkmcnt(%d)" % min(9, 39 - i))
                acc = vAcc + 4 * t
                cin = "0" if ks == 0 else "v[%d:%d]" % (acc, acc + 3)
                w = "a[%d:%d]" % (4 * ks, 4 * ks + 3)
                m = "v[%d:%d]" % (b, b + 3)
                if swapped:
                    e("v_mfma_f32_16x16x32_bf16 v[%d:%d], %s, %s, %s" % (acc, acc + 3, m, w, cin))
                else:
                    e("v_mfma_f32_16x16x32_bf16 v[%d:%d], %s, %s, %s" % (acc, acc + 3, w, m, cin))
                if i + 10 < 40:
                    rdx(i + 10)
            e("s_nop 7")
            for t in range(2):
                e("v_cvt_pk_bf16_f32 v%d, v%d, v%d" % (vAcc + 8 + 2 * t, vAcc + 4 * t, vAcc + 4 * t + 1))
                e("v_cvt_pk_bf16_f32 v%d, v%d, v%d" % (vAcc + 9 + 2 * t, vAcc + 4 * t + 2, vAcc + 4 * t + 3))
            if swapped:
                e("v_cmp_gt_u32 vcc, 24, v37")
                e("s_mov_b64 exec, vcc")
            for t in range(2):
                if XNOST and tag == "":
                    continue
                e("buffer_store_dwordx2 v[%d:%d], v%d, s[28:31], s73 offen offset:%d sc1" % (vAcc + 8 + 2 * t, vAcc + 9 + 2 * t, vXs, (32 if swapped else 768) * t))
            if swapped:
                e("s_mov_b64 exec, -1")
            else:
                e("s_branch L_xp_done%s" % tag)
        a.lab("L_xp_done%s" % tag)
        e("v_add_u32 v%d, s9, v%d" % (vXe, vXe))
        e("v_add_u32 v%d, s9, v%d" % (vXo, vXo))
        e("s_sub_u32 s9, 0, s9")

    vXe, vXo, vDe, vDo, vXs = 4, 11, 16, 21, 44
    e("v_xor_b32 v6, v2, v10")
    e("v_mul_u32_u24 v%d, 1280, v1" % vXe)
    e("v_lshl_add_u32 v%d, v6, 4, v%d" % (vXe, vXe))
    e("v_xor_b32 v%d, 64, v%d" % (vXo, vXe))
    e("v_add_u32 v%d, %d, v%d" % (vXe, L_X0, vXe))
    e("v_add_u32 v%d, %d, v%d" % (vXo, L_X0, vXo))
    e("s_mov_b32 s9, 40960")
    e("v_mul_u32_u24 v6, 52429, v0")
    e("v_lshrrev_b32 v6, 22, v6")
    e("v_mul_u32_u24 v7, 80, v6")
    e("v_sub_u32 v7, v0, v7")
    e("v_and_b32 v8, 7, v6")
    e("v_xor_b32 v7, v7, v8")
    e("v_mul_u32_u24 v%d, 1280, v6" % vDe)
    e("v_lshl_add_u32 v%d, v7, 4, v%d" % (vDe, vDe))
    e("v_xor_b32 v%d, 64, v%d" % (vDo, vDe))
    e("v_lshl_add_u32 v6, v2, 2, s25")
    e("v_cmp_lt_u32 vcc, 23, v6")
    e("v_subrev_u32 v7, 24, v6")
    e("s_nop 0")
    e("v_cndmask_b32 v7, v6, v7, vcc")
    e("v_cndmask_b32 v8, 0, 1, vcc")
    e("v_mul_u32_u24 v8, 1536, v8")
    e("v_lshl_add_u32 v8, v7, 1, v8")
    e("v_mul_u32_u24 v7, 48, v1")
    e("v_add_u32 v8, v8, v7")
    e("v_lshlrev_b32 v7, 6, v37")
    e("v_lshl_add_u32 v7, v2, 3, v7")
    e("v_add_u32 v7, 3072, v7")
    e("s_cmp_ge_u32 s24, 3")
    e("s_cselect_b64 vcc, -1, 0")
    e("s_nop 0")
    e("v_cndmask_b32 v%d, v8, v7, vcc" % vXs)
    e("s_mul_i32 s27, s21, 4608")
    e("v_add_u32 v%d, s27, v%d" % (vXs, vXs))
    e("s_mul_i32 s14, s20, 36864")
    e("s_lshl_b32 s15, s24, 10")
    e("s_mov_b32 s71, 0")
    e("s_add_u32 s72, s15, %d" % L_X0)
    dma_x()
    e("s_mov_b32 s71, 40960")
    e("s_add_u32 s72, s15, %d" % L_X1)
    dma_x()
    e("s_waitcnt vmcnt(0) lgkmcnt(0)")
    e("s_barrier")
    e("s_mov_b32 s73, s14")
    xp_phase("p0")
    e("s_add_u32 s73, s14, %d" % (32 * 36864))
    xp_phase("p1")
    e("s_waitcnt vmcnt(0)")
    e("s_mul_i32 s27, s20, 160")
    e("s_add_u32 s27, s27, 0x%x" % H0)
    e("s_mul_i32 s75, s21, 20")
    e("s_lshl_b32 s74, s24, 2")
    e("s_add_u32 s75, s75, s74")
    e("s_add_u32 s75, s75, s27")
    e("v_mov_b32 v6, 0")
    e("v_mov_b32 v7, 1")
    e("s_mov_b64 exec, 1")
    e("buffer_store_dword v7, v6, s[44:47], s75 offen sc1")
    e("s_mov_b64 exec, -1")
    e("s_barrier")
    e("s_mov_b32 s71, %d" % (2 * 40960))
    e("s_add_u32 s72, s15, %d" % L_X0)
    dma_x()
    e("s_mov_b32 s71, %d" % (3 * 40960))
    e("s_add_u32 s72, s15, %d" % L_X1)
    e("v_lshlrev_b32 v6, 2, v3")
    e("s_mov_b32 s74, 0")
    a.lab("L_chain_poll0")
    e("v_mov_b32 v7, 1")
    e("v_cmp_gt_u32 vcc, 40, v3")
    e("s_mov_b64 exec, vcc")
    e("buffer_load_dword v7, v6, s[44:47], s27 offen sc1")
    e("s_mov_b64 exec, -1")
    e("s_waitcnt vmcnt(0)")
    e("v_cmp_ne_u32 vcc, 1, v7")
    e("s_add_u32 s74, s74, 1")
    e("s_cmp_gt_u32 s74, %d" % SPIN_MAX)
    e("s_cbranch_scc1 L_chain_done")
    e("s_cbranch_vccnz L_chain_poll0")
    e("s_mov_b32 s61, s14")
    prefetch_x()
    e("s_waitcnt lgkmcnt(0)")
    e("s_barrier")

    a.lab("L_chain_step")
    mark("start")
    e("s_add_u32 s68, s60, 1")
    e("s_and_b32 s68, s68, 1")
    e("s_xor_b32 s69, s68, 1")
    for ks in range(10):
        e("ds_read_b128 v[%d:%d], v5 offset:%d" % (vF + 4 * ks, vF + 4 * ks + 3, L_MEM + 64 * ks))
    e("s_cmp_ge_u32 s24, 3")
    e("s_cbranch_scc1 L_chain_pav")

    def phase_a(swapped):
        for half in range(2):
            for ks in range(10):
                e("s_waitcnt lgkmcnt(%d)" % (9 if half == 0 else 9 - ks))
                kk = half * 10 + ks
                cin = "0" if kk == 0 else "v[%d:%d]" % (vAcc, vAcc + 3)
                w = "a[%d:%d]" % (4 * kk, 4 * kk + 3)
                m = "v[%d:%d]" % (vF + 4 * ks, vF + 4 * ks + 3)
                if swapped:
                    e("v_mfma_f32_16x16x32_bf16 v[%d:%d], %s, %s, %s" % (vAcc, vAcc + 3, m, w, cin))
                else:
                    e("v_mfma_f32_16x16x32_bf16 v[%d:%d], %s, %s, %s" % (vAcc, vAcc + 3, w, m, cin))
                if half == 0:
                    e("ds_read_b128 v[%d:%d], v5 offset:%d" % (vF + 4 * ks, vF + 4 * ks + 3, L_MEM + 64 * (10 + ks)))
            if half == 0:
                pass
    phase_a(False)
    e("s_mul_i32 s70, s60, %d" % (8 * 12288))
    e("s_nop 6")
    e("v_cvt_pk_bf16_f32 v%d, v%d, v%d" % (vT, vAcc, vAcc + 1))
    e("v_cvt_pk_bf16_f32 v%d, v%d, v%d" % (vT + 1, vAcc + 2, vAcc + 3))
    e("v_and_b32 v%d, -2, v%d" % (vT + 2, vT))
    e("v_or_b32 v%d, s68, v%d" % (vT + 2, vT + 2))
    e("v_mov_b32 v%d, v%d" % (vT + 3, vT + 1))
    e("s_mov_b64 exec, s[62:63]")
    e("buffer_store_dwordx2 v[%d:%d], v22, s[44:47], s51 offen sc1" % (vT + 2, vT + 3))
    e("s_mov_b64 exec, -1")
    e("s_branch L_chain_padone")
    a.lab("L_chain_pav")
    phase_a(True)
    e("s_mul_i32 s70, s60, %d" % (6144 * 16))
    e("s_nop 6")
    e("v_cvt_pk_bf16_f32 v%d, v%d, v%d" % (vT, vAcc, vAcc + 1))
    e("v_cvt_pk_bf16_f32 v%d, v%d, v%d" % (vT + 1, vAcc + 2, vAcc + 3))
    e("v_and_b32 v%d, -2, v%d" % (vT + 2, vT))
    e("v_or_b32 v%d, s68, v%d" % (vT + 2, vT + 2))
    e("v_mov_b32 v%d, v%d" % (vT + 3, vT + 1))
    e("v_cmp_gt_u32 vcc, 24, v37")
    e("s_and_b64 exec, s[64:65], vcc")
    e("buffer_store_dwordx2 v[%d:%d], v23, s[44:47], s51 offen sc1" % (vT + 2, vT + 3))
    e("s_mov_b64 exec, -1")
    a.lab("L_chain_padone")
    e("s_waitcnt vmcnt(1)")
    e("s_mov_b64 exec, s[100:101]")
    e("ds_write_b128 v35, v[%d:%d]" % (vT + 18, vT + 21))
    e("s_mov_b64 exec, -1")
    for i in range(3):
        if i == 2:
            e("s_mov_b64 exec, s[48:49]")
        e("ds_write_b128 v%d, v[%d:%d]" % (28 + i, vX + 4 * i, vX + 4 * i + 3))
        e("ds_write_b128 v%d, v[%d:%d]" % (38 + i, vX + 12 + 4 * i, vX + 12 + 4 * i + 3))
    e("s_mov_b64 exec, -1")
    mark("pub1")
    e("s_mov_b32 s74, 0")
    a.lab("L_chain_poll1")
    e("buffer_load_dwordx4 v[%d:%d], v17, s[44:47], s51 offen sc1" % (vT, vT + 3))
    e("s_mov_b64 exec, s[66:67]")
    e("buffer_load_dwordx4 v[%d:%d], v17, s[44:47], s50 offen sc1" % (vT + 4, vT + 7))
    e("s_mov_b64 exec, -1")
    e("s_waitcnt vmcnt(0)")
    e("v_xor_b32 v%d, s69, v%d" % (vT + 8, vT))
    e("v_xor_b32 v%d, s69, v%d" % (vT + 9, vT + 2))
    e("v_and_b32 v%d, v%d, v%d" % (vT + 8, vT + 8, vT + 9))
    e("v_xor_b32 v%d, s69, v%d" % (vT + 9, vT + 4))
    e("v_xor_b32 v%d, s69, v%d" % (vT + 10, vT + 6))
    e("v_and_b32 v%d, v%d, v%d" % (vT + 9, vT + 9, vT + 10))
    e("v_cndmask_b32 v%d, 1, v%d, s[66:67]" % (vT + 9, vT + 9))
    e("v_and_b32 v%d, v%d, v%d" % (vT + 8, vT + 8, vT + 9))
    e("v_and_b32 v%d, 1, v%d" % (vT + 8, vT + 8))
    e("v_cmp_eq_u32 vcc, 0, v%d" % (vT + 8))
    e("s_add_u32 s74, s74, 1")
    e("s_cmp_gt_u32 s74, %d" % SPIN_MAX)
    e("s_cbranch_scc1 L_chain_done")
    e("s_cbranch_vccz L_chain_poll1_ok")
    e("s_sleep %d" % SLEEP)
    e("s_branch L_chain_poll1")
    a.lab("L_chain_poll1_ok")
    mark("got1")
    e("ds_write_b128 v46, v[%d:%d]" % (vT, vT + 3))
    e("s_mov_b64 exec, s[66:67]")
    e("ds_write_b128 v47, v[%d:%d]" % (vT + 4, vT + 7))
    e("s_mov_b64 exec, -1")
    e("s_waitcnt lgkmcnt(0)")
    e("s_barrier")
    mark("scat")
    def rd(ks):
        b = vF + 16 * (ks & 1)
        for t in range(3):
            e("ds_read_b128 v[%d:%d], v15 offset:%d" % (b + 4 * t, b + 4 * t + 3, L_K + 16 * t * QROW + 64 * ks))
        e("ds_read_b128 v[%d:%d], v19 offset:%d" % (b + 12, b + 15, L_Q + 64 * ks))
    e("s_add_u32 s75, s60, 1")
    slot_off(61, 75)
    e("s_add_u32 s75, s60, 2")
    slot_off(73, 75)
    rd(0)
    for ks in range(6):
        if ks < 5:
            rd(ks + 1)
            e("s_waitcnt lgkmcnt(4)")
        else:
            e("s_waitcnt lgkmcnt(0)")
        b = vF + 16 * (ks & 1)
        for t in range(3):
            acc = vAcc + 4 * t
            cin = "0" if ks == 0 else "v[%d:%d]" % (acc, acc + 3)
            e("v_mfma_f32_16x16x32_bf16 v[%d:%d], v[%d:%d], v[%d:%d], %s" % (acc, acc + 3, b + 4 * t, b + 4 * t + 3, b + 12, b + 15, cin))
    prefetch_x()
    e("s_cmp_gt_u32 s60, %d" % (60 if not XNODMA else 0))
    e("s_cbranch_scc1 L_chain_nodma")
    dma_x()
    e("s_add_u32 s71, s71, 40960")
    e("s_sub_u32 s72, s72, s9")
    a.lab("L_chain_nodma")
    def rdv(rnd):
        for q in range(6):
            et = rnd * 6 + q
            b = vF + 6 * q
            for k in range(3):
                e("ds_read_b64 v[%d:%d], v20 offset:%d" % (b + 2 * k, b + 2 * k + 1, L_V + 16 * et * VROW + 32 * k))
    e("s_nop 2")
    rdv(0)
    mark("scores")
    bf16_round(a, vAcc, 12, vT)
    for k in range(0, 12, 2):
        e("v_pk_mul_f32 v[%d:%d], v[%d:%d], s[10:11]" % (vAcc + k, vAcc + k + 1, vAcc + k, vAcc + k + 1))
    bf16_round(a, vAcc, 12, vT)
    e("v_mov_b32 v%d, 0xce6e6b28" % vT)
    for k in range(12):
        e("v_cndmask_b32 v%d, v%d, v%d, s[%d:%d]" % (vAcc + k, vAcc + k, vT, 76 + 2 * k, 77 + 2 * k))
    e("v_max3_f32 v%d, v%d, v%d, v%d" % (vT, vAcc, vAcc + 1, vAcc + 2))
    for k in range(3, 11, 2):
        e("v_max3_f32 v%d, v%d, v%d, v%d" % (vT, vT, vAcc + k, vAcc + k + 1))
    e("v_max_f32 v%d, v%d, v%d" % (vT, vT, vAcc + 11))
    for adr in (31, 32):
        e("ds_bpermute_b32 v%d, v%d, v%d" % (vT + 1, adr, vT))
        e("s_waitcnt lgkmcnt(0)")
        e("v_max_f32 v%d, v%d, v%d" % (vT, vT, vT + 1))
    e("v_mul_f32 v%d, %s, v%d" % (vT, LOG2E_HEX, vT))
    for k in range(12):
        e("v_fma_f32 v%d, v%d, s8, -v%d" % (vAcc + k, vAcc + k, vT))
        e("v_exp_f32 v%d, v%d" % (vAcc + k, vAcc + k))
    e("s_nop 0")
    for k in range(0, 12, 4):
        e("v_pk_add_f32 v[%d:%d], v[%d:%d], v[%d:%d]" % (vT + 2 + k // 2, vT + 3 + k // 2, vAcc + k, vAcc + k + 1, vAcc + k + 2, vAcc + k + 3))
    e("v_pk_add_f32 v[%d:%d], v[%d:%d], v[%d:%d]" % (vT + 2, vT + 3, vT + 2, vT + 3, vT + 4, vT + 5))
    e("v_pk_add_f32 v[%d:%d], v[%d:%d], v[%d:%d]" % (vT + 2, vT + 3, vT + 2, vT + 3, vT + 6, vT + 7))
    e("v_add_f32 v%d, v%d, v%d" % (vT, vT + 2, vT + 3))
    for adr in (31, 32):
        e("ds_bpermute_b32 v%d, v%d, v%d" % (vT + 1, adr, vT))
        e("s_waitcnt lgkmcnt(0)")
        e("v_add_f32 v%d, v%d, v%d" % (vT, vT, vT + 1))
    e("v_rcp_f32 v%d, v%d" % (vT, vT))
    e("s_nop 0")
    e("v_mov_b32 v%d, v%d" % (vT + 1, vT))
    for k in range(0, 12, 2):
        e("v_pk_mul_f32 v[%d:%d], v[%d:%d], v[%d:%d]" % (vAcc + k, vAcc + k + 1, vAcc + k, vAcc + k + 1, vT, vT + 1))
    vP = vT + 8
    vD = vT + 14
    for i in range(6):
        e("v_cvt_pk_bf16_f32 v%d, v%d, v%d" % (vP + i, vAcc + 2 * i, vAcc + 2 * i + 1))
    mark("smax")
    e("s_nop 0")
    e("s_mul_i32 s70, s60, %d" % (32 * 12288))
    e("s_add_u32 s70, s70, s58")
    accs = [vAcc, vAcc + 4, vAcc + 8, vAcc + 12, vT, vT + 4]
    vOb = vF + 36
    for rnd in range(2):
        e("s_waitcnt lgkmcnt(0)")
        for q in range(6):
            b = vF + 6 * q
            e("v_mfma_f32_16x16x32_bf16 v[%d:%d], v[%d:%d], v[%d:%d], 0" % (accs[q], accs[q] + 3, b, b + 3, vP, vP + 3))
        e("s_nop 1")
        for q in range(6):
            b = vF + 6 * q
            e("v_mfma_f32_16x16x16_bf16 v[%d:%d], v[%d:%d], v[%d:%d], v[%d:%d]" % (accs[q], accs[q] + 3, b + 4, b + 5, vP + 4, vP + 5, accs[q], accs[q] + 3))
        if rnd == 0:
            rdv(1)
        else:
            e("s_nop 7")
        for p in range(3):
            i = rnd * 3 + p
            for hh in range(2):
                ac = accs[2 * p + hh]
                e("v_cvt_pk_bf16_f32 v%d, v%d, v%d" % (vOb + 2 * hh, ac, ac + 1))
                e("v_cvt_pk_bf16_f32 v%d, v%d, v%d" % (vOb + 2 * hh + 1, ac + 2, ac + 3))
            e("s_nop 1")
            cin = "0" if i == 0 else "v[%d:%d]" % (vD, vD + 3)
            e("v_mfma_f32_16x16x32_bf16 v[%d:%d], a[%d:%d], v[%d:%d], %s" % (vD, vD + 3, 80 + 4 * i, 83 + 4 * i, vOb, vOb + 3, cin))
            e("s_cmp_lg_u32 s24, %d" % (i % 5))
            e("s_cbranch_scc1 L_chain_nox%d" % i)
            e("s_mov_b64 exec, s[12:13]")
            e("buffer_store_dwordx2 v[%d:%d], v36, s[40:43], s70 offen offset:%d" % (vOb, vOb + 1, 64 * i))
            e("buffer_store_dwordx2 v[%d:%d], v36, s[40:43], s70 offen offset:%d" % (vOb + 2, vOb + 3, 64 * i + 32))
            e("s_mov_b64 exec, -1")
            a.lab("L_chain_nox%d" % i)
    e("s_cmp_eq_u32 s60, 63")
    e("s_cbranch_scc1 L_chain_done")
    e("s_nop 7")
    e("v_cvt_pk_bf16_f32 v%d, v%d, v%d" % (vT, vD, vD + 1))
    e("v_cvt_pk_bf16_f32 v%d, v%d, v%d" % (vT + 1, vD + 2, vD + 3))
    e("v_and_b32 v%d, -2, v%d" % (vT, vT))
    e("v_or_b32 v%d, s68, v%d" % (vT, vT))
    e("s_mov_b64 exec, s[62:63]")
    e("buffer_store_dwordx2 v[%d:%d], v33, s[44:47], s53 offen sc1" % (vT, vT + 1))
    e("s_mov_b64 exec, -1")
    mark("pub2")
    e("s_cmp_ge_u32 s2, 160")
    e("s_cbranch_scc1 L_chain_nored")
    e("s_cmp_lg_u32 s24, 0")
    e("s_cbranch_scc1 L_chain_nored")
    e("s_mov_b32 s74, 0")
    a.lab("L_chain_poll2")
    e("buffer_load_dwordx4 v[%d:%d], v18, s[44:47], s52 offen sc1" % (vAcc, vAcc + 3))
    e("buffer_load_dwordx4 v[%d:%d], v18, s[44:47], s52 offen offset:1024 sc1" % (vAcc + 4, vAcc + 7))
    e("s_waitcnt vmcnt(0)")
    e("v_xor_b32 v%d, s69, v%d" % (vT + 8, vAcc))
    e("v_xor_b32 v%d, s69, v%d" % (vT + 9, vAcc + 2))
    e("v_and_b32 v%d, v%d, v%d" % (vT + 8, vT + 8, vT + 9))
    e("v_xor_b32 v%d, s69, v%d" % (vT + 9, vAcc + 4))
    e("v_xor_b32 v%d, s69, v%d" % (vT + 10, vAcc + 6))
    e("v_and_b32 v%d, v%d, v%d" % (vT + 9, vT + 9, vT + 10))
    e("v_and_b32 v%d, v%d, v%d" % (vT + 8, vT + 8, vT + 9))
    e("v_and_b32 v%d, 1, v%d" % (vT + 8, vT + 8))
    e("v_cmp_eq_u32 vcc, 0, v%d" % (vT + 8))
    e("s_add_u32 s74, s74, 1")
    e("s_cmp_gt_u32 s74, %d" % SPIN_MAX)
    e("s_cbranch_scc1 L_chain_done")
    e("s_cbranch_vccz L_chain_poll2_ok")
    e("s_sleep %d" % SLEEP)
    e("s_branch L_chain_poll2")
    a.lab("L_chain_poll2_ok")
    mark("got2")
    e("v_mfma_f32_16x16x32_bf16 v[%d:%d], v[24:27], v[%d:%d], 0" % (vT, vT + 3, vAcc, vAcc + 3))
    e("v_mfma_f32_16x16x32_bf16 v[%d:%d], v[24:27], v[%d:%d], v[%d:%d]" % (vT, vT + 3, vAcc + 4, vAcc + 7, vT, vT + 3))
    e("s_nop 7")
    for m in (4, 8):
        for r in range(4):
            e("ds_swizzle_b32 v%d, v%d offset:0x%x" % (vT + 4 + r, vT + r, (m << 10) | 0x1F))
        e("s_waitcnt lgkmcnt(0)")
        for r in range(4):
            e("v_add_f32 v%d, v%d, v%d" % (vT + r, vT + r, vT + 4 + r))
    e("v_cvt_pk_bf16_f32 v%d, v%d, v%d" % (vT, vT, vT + 1))
    e("v_cvt_pk_bf16_f32 v%d, v%d, v%d" % (vT + 1, vT + 2, vT + 3))
    e("v_and_b32 v%d, -2, v%d" % (vT, vT))
    e("v_or_b32 v%d, s68, v%d" % (vT, vT))
    e("v_cmp_gt_u32 vcc, 4, v1")
    e("s_and_b64 exec, vcc, s[64:65]")
    for rr in range(NREP):
        e("s_add_u32 s75, s54, %d" % (rr * 10240))
        e("buffer_store_dwordx2 v[%d:%d], v41, s[44:47], s75 offen sc1" % (vT, vT + 1))
    e("s_mov_b64 exec, -1")
    a.lab("L_chain_nored")
    mark("pub3")
    e("s_cmp_gt_u32 s60, %d" % (61 if not XNOXP else 0))
    e("s_cbranch_scc1 L_chain_noxp")
    xp_phase("")
    a.lab("L_chain_noxp")
    e("s_mov_b32 s74, 0")
    a.lab("L_chain_poll3")
    e("buffer_load_dwordx4 v[%d:%d], v17, s[44:47], s55 offen sc1" % (vT, vT + 3))
    e("buffer_load_dwordx4 v[%d:%d], v17, s[44:47], s56 offen sc1" % (vT + 4, vT + 7))
    e("s_waitcnt vmcnt(0)")
    e("v_xor_b32 v%d, s69, v%d" % (vT + 8, vT))
    e("v_xor_b32 v%d, s69, v%d" % (vT + 9, vT + 2))
    e("v_and_b32 v%d, v%d, v%d" % (vT + 8, vT + 8, vT + 9))
    e("v_xor_b32 v%d, s69, v%d" % (vT + 9, vT + 4))
    e("v_xor_b32 v%d, s69, v%d" % (vT + 10, vT + 6))
    e("v_and_b32 v%d, v%d, v%d" % (vT + 9, vT + 9, vT + 10))
    e("v_and_b32 v%d, v%d, v%d" % (vT + 8, vT + 8, vT + 9))
    e("v_and_b32 v%d, 1, v%d" % (vT + 8, vT + 8))
    e("v_cmp_eq_u32 vcc, 0, v%d" % (vT + 8))
    e("s_add_u32 s74, s74, 1")
    e("s_cmp_gt_u32 s74, %d" % SPIN_MAX)
    e("s_cbranch_scc1 L_chain_done")
    e("s_cbranch_vccz L_chain_poll3_ok")
    e("s_sleep %d" % SLEEP)
    e("s_branch L_chain_poll3")
    a.lab("L_chain_poll3_ok")
    mark("got3")
    e("ds_write_b64 v42, v[%d:%d] offset:%d" % (vT, vT + 1, L_MEM))
    e("ds_write_b64 v42, v[%d:%d] offset:%d" % (vT + 2, vT + 3, L_MEM + MROW))
    e("ds_write_b64 v43, v[%d:%d] offset:%d" % (vT + 4, vT + 5, L_MEM))
    e("ds_write_b64 v43, v[%d:%d] offset:%d" % (vT + 6, vT + 7, L_MEM + MROW))
    e("s_add_u32 s60, s60, 1")
    e("s_waitcnt lgkmcnt(0)")
    e("s_barrier")
    e("s_branch L_chain_step")
    a.lab("L_chain_done")
    e("s_mov_b64 exec, -1")
    if INSTR:
        e("s_cmp_lg_u32 s24, 0")
        e("s_cbranch_scc1 L_chain_end")
        a.srd(16, 4, 5, 0xC000000, 65536)
        e("s_lshl_b32 s20, s2, 7")
        e("v_mov_b32 v1, s20")
        for i in range(17):
            e("v_mov_b32 v2, s%d" % (76 + i))
            e("buffer_store_dword v2, v1, s[16:19], 0 offen offset:%d" % (4 * i))
        print("marks:", marks)
    a.lab("L_chain_end")
    a.end(name, 152, agpr=104)
```

```python
NAME = "sequential_preLN__memory_aug_recurrent_mem_tr__glu_gated_bilinear__prompt"

KA_X, KA_MEM0, KA_WQ, KA_WK, KA_WV, KA_WO, KA_SEG, KA_BX, KA_WG, KA_WU, KA_WD, KA_OUT, KA_DBG, KA_WS = [8 * i for i in range(14)]

XN    = 0x0000000
WQKVT = 0x0300000
WOT   = 0x1A00000
WGUT  = 0x2200000
WDT   = 0x2600000
QB    = 0x2800000
KB    = 0x4000000
VT    = 0x5800000
KM    = 0x7000000
VM    = 0x7600000
OX    = 0x7C00000
HB    = 0x9400000
HN    = 0x9700000
GU    = 0x9A00000
PARTB = 0xA800000
HOP   = 0xA000000
HOP1  = HOP
HOP2  = HOP + 0x80000
HOP3  = HOP + 0x80000 + 0x300000
HOP_SIZE = 0x400000


class Asm:
    def __init__(self):
        self.L = []
        self.kernels = []

    def e(self, s):
        self.L.append("    " + s)

    def lab(self, s):
        self.L.append(s + ":")

    def c(self, s):
        self.L.append("    ; " + s)

    def begin(self, name):
        self.L.append(".globl " + name)
        self.L.append(".p2align 8")
        self.L.append(".type %s,@function" % name)
        self.L.append(name + ":")

    def end(self, name, vgpr, sgpr=102, agpr=0):
        self.e("s_endpgm")
        self.kernels.append((name, vgpr, sgpr, agpr))

    def srd(self, d, lo, hi, off, size):
        if off:
            self.e("s_add_u32 s%d, s%d, 0x%x" % (d, lo, off))
            self.e("s_addc_u32 s%d, s%d, 0" % (d + 1, hi))
        else:
            self.e("s_mov_b32 s%d, s%d" % (d, lo))
            self.e("s_mov_b32 s%d, s%d" % (d + 1, hi))
        self.e("s_and_b32 s%d, s%d, 0xffff" % (d + 1, d + 1))
        self.e("s_mov_b32 s%d, 0x%x" % (d + 2, size))
        self.e("s_mov_b32 s%d, 0x20000" % (d + 3))

    def sdiv(self, q, r, src, d, tmp):
        if d & (d - 1) == 0:
            sh = d.bit_length() - 1
            self.e("s_lshr_b32 s%d, s%d, %d" % (q, src, sh))
            self.e("s_and_b32 s%d, s%d, %d" % (r, src, d - 1))
            return
        magic = (2 ** 32 + d - 1) // d
        self.e("s_mov_b32 s%d, 0x%x" % (tmp, magic))
        self.e("s_mul_hi_u32 s%d, s%d, s%d" % (q, src, tmp))
        self.e("s_mul_i32 s%d, s%d, %d" % (tmp, q, d))
        self.e("s_sub_u32 s%d, s%d, s%d" % (r, src, tmp))

    def text(self, launches):
        out = []
        for (k, g, b, lds) in launches:
            out.append("; @launch kernel=%s grid=(%d,1,1) block=(%d,1,1) lds=%d" % (k, g, b, lds))
        out.append('.amdgcn_target "amdgcn-amd-amdhsa--gfx950"')
        out.append(".text")
        out += self.L
        out.append('.section .rodata,"a"')
        for (name, vgpr, sgpr, agpr) in self.kernels:
            acc = (vgpr + 3) // 4 * 4
            if agpr:
                vgpr = acc + agpr
            out.append(".p2align 6")
            out.append(".amdhsa_kernel " + name)
            out.append("  .amdhsa_next_free_vgpr %d" % vgpr)
            out.append("  .amdhsa_next_free_sgpr %d" % sgpr)
            out.append("  .amdhsa_accum_offset %d" % acc)
            out.append("  .amdhsa_group_segment_fixed_size 0")
            out.append("  .amdhsa_kernarg_size 112")
            out.append("  .amdhsa_user_sgpr_count 2")
            out.append("  .amdhsa_user_sgpr_kernarg_segment_ptr 1")
            out.append("  .amdhsa_system_sgpr_workgroup_id_x 1")
            out.append(".end_amdhsa_kernel")
        return "\n".join(out) + "\n"


def wave_reduce(a, op, v, t, vx32):
    ins = "v_add_f32" if op == "add" else "v_max_f32"
    for m in (1, 2, 4, 8, 16):
        a.e("ds_swizzle_b32 v%d, v%d offset:0x%x" % (t, v, (m << 10) | 0x1F))
        a.e("s_waitcnt lgkmcnt(0)")
        a.e("%s v%d, v%d, v%d" % (ins, v, v, t))
    a.e("ds_bpermute_b32 v%d, v%d, v%d" % (t, vx32, v))
    a.e("s_waitcnt lgkmcnt(0)")
    a.e("%s v%d, v%d, v%d" % (ins, v, v, t))
```

```python
from common import *

RS = 144


def gen_gemm(a, name, A_off, A_size, lda, B_off, B_size, ldb, K, BM, BN, tilesM, tilesN, epi, ksplit=1):
    e = a.e
    TM, TN = BM // 64, BN // 64
    nA, nB = BM // 32, BN // 32
    swap = epi["kind"] != "vt_mixed"
    grid = tilesM * tilesN * ksplit
    K = K // ksplit
    stageA = BM * RS
    stage = (BM + BN) * RS
    lds = 2 * stage
    vAoff = 2
    vBoff = vAoff + nA
    vW = vBoff + nB
    vRa = vW + 1
    vRb = vRa + 1
    vW1 = vRb + 1
    vRa1 = vW1 + 1
    vRb1 = vRa1 + 1
    vSt = (vRb1 + 1 + 3) // 4 * 4
    vFr = vSt + (nA + nB) * 4
    vAcc = vFr + 2 * (TM + TN) * 4
    vAcc = (vAcc + 3) // 4 * 4
    nacc = TM * TN * 16
    vT = vAcc + nacc
    a.begin(name)
    e("s_cmp_ge_u32 s2, %d" % grid)
    e("s_cbranch_scc1 L_%s_end" % name)
    e("s_load_dwordx2 s[4:5], s[0:1], %d" % KA_WS)
    e("s_load_dwordx2 s[6:7], s[0:1], %d" % KA_X)
    e("s_load_dwordx2 s[28:29], s[0:1], %d" % KA_OUT)
    if ksplit > 1:
        a.sdiv(38, 39, 2, tilesM * tilesN, 22)
        a.sdiv(20, 21, 39, tilesM, 22)
    else:
        e("s_mov_b32 s38, 0")
        a.sdiv(20, 21, 2, tilesM, 22)
    e("s_mul_i32 s22, s21, %d" % BM)
    e("s_mul_i32 s23, s20, %d" % BN)
    e("s_waitcnt lgkmcnt(0)")
    a.srd(8, 4, 5, A_off, A_size)
    a.srd(12, 4, 5, B_off, B_size)
    e("v_lshrrev_b32 v1, 3, v0")
    e("v_and_b32 v%d, 7, v0" % vW)
    e("v_lshlrev_b32 v%d, 4, v%d" % (vW, vW))
    e("s_mov_b32 s24, %d" % lda)
    e("s_mov_b32 s25, %d" % ldb)
    for i in range(nA):
        e("v_add_u32 v%d, s22, v1" % (vAoff + i))
        if i:
            e("v_add_u32 v%d, %d, v%d" % (vAoff + i, 32 * i, vAoff + i))
        e("v_mul_lo_u32 v%d, v%d, s24" % (vAoff + i, vAoff + i))
        e("v_add_u32 v%d, v%d, v%d" % (vAoff + i, vAoff + i, vW))
    for i in range(nB):
        e("v_add_u32 v%d, s23, v1" % (vBoff + i))
        if i:
            e("v_add_u32 v%d, %d, v%d" % (vBoff + i, 32 * i, vBoff + i))
        e("v_mul_lo_u32 v%d, v%d, s25" % (vBoff + i, vBoff + i))
        e("v_add_u32 v%d, v%d, v%d" % (vBoff + i, vBoff + i, vW))
    e("v_mul_u32_u24 v1, %d, v1" % RS)
    e("v_add_u32 v%d, v%d, v1" % (vW, vW))
    e("v_lshrrev_b32 v1, 6, v0")
    e("v_and_b32 v%d, 1, v1" % vRa)
    e("v_lshrrev_b32 v%d, 1, v1" % vRb)
    e("v_mul_u32_u24 v%d, %d, v%d" % (vRa, BM // 2, vRa))
    e("v_mul_u32_u24 v%d, %d, v%d" % (vRb, BN // 2, vRb))
    e("v_and_b32 v1, 31, v0")
    e("v_add_u32 v%d, v%d, v1" % (vRa, vRa))
    e("v_add_u32 v%d, v%d, v1" % (vRb, vRb))
    e("v_mul_u32_u24 v%d, %d, v%d" % (vRa, RS, vRa))
    e("v_mul_u32_u24 v%d, %d, v%d" % (vRb, RS, vRb))
    e("v_bfe_u32 v1, v0, 5, 1")
    e("v_lshlrev_b32 v1, 4, v1")
    e("v_add_u32 v%d, v%d, v1" % (vRa, vRa))
    e("v_add_u32 v%d, v%d, v1" % (vRb, vRb))
    e("v_add_u32 v%d, %d, v%d" % (vRb, stageA, vRb))
    e("v_add_u32 v%d, %d, v%d" % (vW1, stage, vW))
    e("v_add_u32 v%d, %d, v%d" % (vRa1, stage, vRa))
    e("v_add_u32 v%d, %d, v%d" % (vRb1, stage, vRb))
    for i in range(nacc):
        e("v_mov_b32 v%d, 0" % (vAcc + i))

    def gload(skreg):
        for i in range(nA):
            e("buffer_load_dwordx4 v[%d:%d], v%d, s[8:11], %s offen" % (vSt + 4 * i, vSt + 4 * i + 3, vAoff + i, skreg))
        for i in range(nB):
            e("buffer_load_dwordx4 v[%d:%d], v%d, s[12:15], %s offen" % (vSt + 4 * (nA + i), vSt + 4 * (nA + i) + 3, vBoff + i, skreg))

    def lwrite(buf):
        for i in range(nA):
            e("ds_write_b128 v%d, v[%d:%d] offset:%d" % (vW1 if buf else vW, vSt + 4 * i, vSt + 4 * i + 3, i * 32 * RS))
        for i in range(nB):
            e("ds_write_b128 v%d, v[%d:%d] offset:%d" % (vW1 if buf else vW, vSt + 4 * (nA + i), vSt + 4 * (nA + i) + 3, stageA + i * 32 * RS))

    def fread(buf, ks, fs):
        base = vFr + fs * (TM + TN) * 4
        for t in range(TM):
            e("ds_read_b128 v[%d:%d], v%d offset:%d" % (base + 4 * t, base + 4 * t + 3, vRa1 if buf else vRa, t * 32 * RS + ks * 32))
        for t in range(TN):
            e("ds_read_b128 v[%d:%d], v%d offset:%d" % (base + 4 * (TM + t), base + 4 * (TM + t) + 3, vRb1 if buf else vRb, t * 32 * RS + ks * 32))

    def mfmas(fs, vt_mode):
        base = vFr + fs * (TM + TN) * 4
        for tn in range(TN):
            for tm in range(TM):
                acc = vAcc + (tn * TM + tm) * 16
                fa = base + 4 * tm
                fb = base + 4 * (TM + tn)
                if vt_mode:
                    e("v_mfma_f32_32x32x16_bf16 v[%d:%d], v[%d:%d], v[%d:%d], v[%d:%d]" % (acc, acc + 15, fa, fa + 3, fb, fb + 3, acc, acc + 15))
                else:
                    e("v_mfma_f32_32x32x16_bf16 v[%d:%d], v[%d:%d], v[%d:%d], v[%d:%d]" % (acc, acc + 15, fb, fb + 3, fa, fa + 3, acc, acc + 15))

    def mainloop(tag, vt_mode):
        nk = K // 64
        assert nk % 2 == 0
        e("s_mul_i32 s26, s38, %d" % (K * 2))
        gload("s26")
        e("s_waitcnt vmcnt(0)")
        lwrite(0)
        e("s_add_u32 s26, s26, 128")
        e("s_waitcnt lgkmcnt(0)")
        gload("s26")
        e("s_mov_b32 s27, 0")
        e("s_barrier")
        a.lab("L_%s_loop%s" % (name, tag))
        for buf in range(2):
            fread(buf, 0, 0)
            for ks in range(4):
                if ks < 3:
                    fread(buf, ks + 1, (ks + 1) & 1)
                    e("s_waitcnt lgkmcnt(%d)" % (TM + TN))
                else:
                    e("s_waitcnt lgkmcnt(0)")
                mfmas(ks & 1, vt_mode)
            e("s_waitcnt vmcnt(0)")
            lwrite(buf ^ 1)
            e("s_add_u32 s26, s26, 128")
            e("s_waitcnt lgkmcnt(0)")
            gload("s26")
            e("s_barrier")
        e("s_add_u32 s27, s27, 2")
        e("s_cmp_lt_u32 s27, %d" % nk)
        e("s_cbranch_scc1 L_%s_loop%s" % (name, tag))
        e("s_nop 15")
        e("s_nop 3")

    kind = epi["kind"]

    def epi_coords():
        e("v_lshrrev_b32 v1, 6, v0")
        e("v_and_b32 v2, 1, v1")
        e("v_lshrrev_b32 v3, 1, v1")
        e("v_mul_u32_u24 v2, %d, v2" % (BM // 2))
        e("v_mul_u32_u24 v3, %d, v3" % (BN // 2))
        e("v_and_b32 v1, 31, v0")
        e("v_bfe_u32 v4, v0, 5, 1")
        e("v_lshlrev_b32 v4, 2, v4")

    if kind in ("qkv",):
        e("s_cmp_ge_u32 s23, 12288")
        e("s_cbranch_scc1 L_%s_v" % name)
        mainloop("qk", False)
        e("s_mov_b32 s30, 0x%x" % QB)
        e("s_mov_b32 s31, 0x%x" % KB)
        e("s_cmp_ge_u32 s23, 6144")
        e("s_cselect_b32 s30, s31, s30")
        e("s_cselect_b32 s31, 6144, 0")
        e("s_sub_u32 s23, s23, s31")
        e("s_add_u32 s16, s4, s30")
        e("s_addc_u32 s17, s5, 0")
        e("s_and_b32 s17, s17, 0xffff")
        e("s_mov_b32 s18, %d" % (2048 * 6144 * 2))
        e("s_mov_b32 s19, 0x20000")
        epi_coords()
        e("v_add_u32 v1, v1, v2")
        e("v_add_u32 v1, s22, v1")
        e("v_add_u32 v3, v3, v4")
        e("v_add_u32 v3, s23, v3")
        e("s_mov_b32 s24, 12288")
        e("v_mul_lo_u32 v1, v1, s24")
        e("v_lshl_add_u32 v1, v3, 1, v1")
        for tn in range(TN):
            for tm in range(TM):
                acc = vAcc + (tn * TM + tm) * 16
                e("s_mov_b32 s25, %d" % (tm * 32 * 12288))
                for g in range(4):
                    e("v_cvt_pk_bf16_f32 v%d, v%d, v%d" % (vT, acc + 4 * g, acc + 4 * g + 1))
                    e("v_cvt_pk_bf16_f32 v%d, v%d, v%d" % (vT + 1, acc + 4 * g + 2, acc + 4 * g + 3))
                    e("buffer_store_dwordx2 v[%d:%d], v1, s[16:19], s25 offen offset:%d" % (vT, vT + 1, (tn * 32 + 8 * g) * 2))
                    e("s_nop 1")
        e("s_endpgm")
        a.lab("L_%s_v" % name)
        mainloop("v", True)
        a.srd(16, 4, 5, VT, 64 * 6144 * 64)
        e("s_sub_u32 s23, s23, 12288")
        epi_coords()
        e("v_add_u32 v1, v1, v3")
        e("v_add_u32 v1, s23, v1")
        e("v_lshlrev_b32 v1, 6, v1")
        e("v_lshl_add_u32 v1, v4, 1, v1")
        e("v_add_u32 v2, s22, v2")
        e("v_lshrrev_b32 v2, 5, v2")
        e("s_mov_b32 s24, %d" % (6144 * 64))
        e("v_mul_lo_u32 v2, v2, s24")
        e("v_add_u32 v1, v1, v2")
        for tn in range(TN):
            for tm in range(TM):
                acc = vAcc + (tn * TM + tm) * 16
                e("s_mov_b32 s25, %d" % (tm * 6144 * 64 + tn * 32 * 64))
                for g in range(4):
                    e("v_cvt_pk_bf16_f32 v%d, v%d, v%d" % (vT, acc + 4 * g, acc + 4 * g + 1))
                    e("v_cvt_pk_bf16_f32 v%d, v%d, v%d" % (vT + 1, acc + 4 * g + 2, acc + 4 * g + 3))
                    e("buffer_store_dwordx2 v[%d:%d], v1, s[16:19], s25 offen offset:%d" % (vT, vT + 1, 16 * g))
                    e("s_nop 1")
    elif kind == "resid":
        mainloop("m", False)
        if epi["res"] == "x":
            a.srd(16, 6, 7, 0, 2048 * 1280)
        else:
            a.srd(16, 4, 5, HB, 2048 * 1280)
        if epi["dst"] == "out":
            a.srd(32, 28, 29, 0, 2048 * 1280)
        else:
            a.srd(32, 4, 5, HB, 2048 * 1280)
        epi_coords()
        e("v_add_u32 v1, v1, v2")
        e("v_add_u32 v1, s22, v1")
        e("v_add_u32 v3, v3, v4")
        e("v_add_u32 v3, s23, v3")
        e("s_mov_b32 s24, 1280")
        e("v_mul_lo_u32 v1, v1, s24")
        e("v_lshl_add_u32 v1, v3, 1, v1")
        for tn in range(TN):
            for tm in range(TM):
                acc = vAcc + (tn * TM + tm) * 16
                e("s_mov_b32 s25, %d" % (tm * 32 * 1280))
                for g in range(4):
                    e("buffer_load_dwordx2 v[%d:%d], v1, s[16:19], s25 offen offset:%d" % (vT + 2 * g, vT + 2 * g + 1, (tn * 32 + 8 * g) * 2))
                e("s_waitcnt vmcnt(0)")
                for g in range(4):
                    r = vT + 2 * g
                    t = vT + 8
                    e("v_cvt_pk_bf16_f32 v%d, v%d, v%d" % (t, acc + 4 * g, acc + 4 * g + 1))
                    e("v_cvt_pk_bf16_f32 v%d, v%d, v%d" % (t + 1, acc + 4 * g + 2, acc + 4 * g + 3))
                    for h in range(2):
                        e("v_lshlrev_b32 v%d, 16, v%d" % (t + 2, t + h))
                        e("v_and_b32 v%d, 0xffff0000, v%d" % (t + 3, t + h))
                        e("v_lshlrev_b32 v%d, 16, v%d" % (t + 4, r + h))
                        e("v_and_b32 v%d, 0xffff0000, v%d" % (t + 5, r + h))
                        e("v_add_f32 v%d, v%d, v%d" % (t + 2, t + 2, t + 4))
                        e("v_add_f32 v%d, v%d, v%d" % (t + 3, t + 3, t + 5))
                        e("v_cvt_pk_bf16_f32 v%d, v%d, v%d" % (r + h, t + 2, t + 3))
                    e("buffer_store_dwordx2 v[%d:%d], v1, s[32:35], s25 offen offset:%d" % (r, r + 1, (tn * 32 + 8 * g) * 2))
                e("s_nop 1")
    elif kind == "part":
        mainloop("m", False)
        a.srd(16, 4, 5, PARTB, 2 * 2048 * 2560)
        epi_coords()
        e("v_add_u32 v1, v1, v2")
        e("v_add_u32 v1, s22, v1")
        e("v_add_u32 v3, v3, v4")
        e("v_add_u32 v3, s23, v3")
        e("s_mov_b32 s24, 2560")
        e("v_mul_lo_u32 v1, v1, s24")
        e("v_lshl_add_u32 v1, v3, 2, v1")
        e("s_mul_i32 s39, s38, %d" % (2048 * 2560))
        for tn in range(TN):
            for tm in range(TM):
                acc = vAcc + (tn * TM + tm) * 16
                e("s_add_u32 s25, s39, %d" % (tm * 32 * 2560))
                for gq in range(4):
                    e("buffer_store_dwordx4 v[%d:%d], v1, s[16:19], s25 offen offset:%d" % (acc + 4 * gq, acc + 4 * gq + 3, (tn * 32 + 8 * gq) * 4))
    elif kind == "gu":
        mainloop("m", False)
        a.srd(16, 4, 5, GU, 2048 * 3072)
        epi_coords()
        e("v_add_u32 v1, v1, v2")
        e("v_add_u32 v1, s22, v1")
        e("s_lshr_b32 s23, s23, 1")
        e("v_lshrrev_b32 v3, 1, v3")
        e("v_add_u32 v3, v3, v4")
        e("v_add_u32 v3, s23, v3")
        e("s_mov_b32 s24, 3072")
        e("v_mul_lo_u32 v1, v1, s24")
        e("v_lshl_add_u32 v1, v3, 1, v1")
        for tn in range(TN):
            for tm in range(TM):
                acc = vAcc + (tn * TM + tm) * 16
                e("s_mov_b32 s25, %d" % (tm * 32 * 3072))
                for gp in range(2):
                    ga = acc + 8 * gp
                    ua = ga + 4
                    t = vT
                    for h in range(2):
                        e("v_cvt_pk_bf16_f32 v%d, v%d, v%d" % (t + 2, ga + 2 * h, ga + 2 * h + 1))
                        e("v_cvt_pk_bf16_f32 v%d, v%d, v%d" % (t + 3, ua + 2 * h, ua + 2 * h + 1))
                        e("v_lshlrev_b32 v%d, 16, v%d" % (t + 4, t + 2))
                        e("v_and_b32 v%d, 0xffff0000, v%d" % (t + 5, t + 2))
                        e("v_lshlrev_b32 v%d, 16, v%d" % (t + 6, t + 3))
                        e("v_and_b32 v%d, 0xffff0000, v%d" % (t + 7, t + 3))
                        e("v_mul_f32 v%d, v%d, v%d" % (t + 4, t + 4, t + 6))
                        e("v_mul_f32 v%d, v%d, v%d" % (t + 5, t + 5, t + 7))
                        e("v_cvt_pk_bf16_f32 v%d, v%d, v%d" % (t + h, t + 4, t + 5))
                    e("buffer_store_dwordx2 v[%d:%d], v1, s[16:19], s25 offen offset:%d" % (t, t + 1, (tn * 16 + 8 * gp) * 2))
                    e("s_nop 1")
    a.lab("L_%s_end" % name)
    a.end(name, vT + (2 if kind in ("qkv", "part") else 16))
    return grid, lds
```

```python
from common import *


def gen_ln_rows(a, src_srd, dst_srd, rowreg, preloaded=False):
    e = a.e
    e("v_and_b32 v1, 63, v0")
    e("v_lshlrev_b32 v2, 2, v1")
    e("v_xor_b32 v3, 32, v1")
    e("v_lshlrev_b32 v3, 2, v3")
    e("s_mul_i32 s40, s%d, 1280" % rowreg)
    if not preloaded:
        for i in range(5):
            e("buffer_load_dword v%d, v2, s[%d:%d], s40 offen offset:%d" % (10 + i, src_srd, src_srd + 3, 256 * i))
        e("s_waitcnt vmcnt(0)")
    for i in range(5):
        e("v_lshlrev_b32 v%d, 16, v%d" % (20 + 2 * i, 10 + i))
        e("v_and_b32 v%d, 0xffff0000, v%d" % (21 + 2 * i, 10 + i))
    e("v_add_f32 v4, v20, v21")
    for i in range(2, 10):
        e("v_add_f32 v4, v4, v%d" % (20 + i))
    wave_reduce(a, "add", 4, 5, 3)
    e("v_mul_f32 v4, 0x3acccccd, v4")
    for i in range(10):
        e("v_sub_f32 v%d, v%d, v4" % (20 + i, 20 + i))
    e("v_mul_f32 v6, v20, v20")
    for i in range(1, 10):
        e("v_fmac_f32 v6, v%d, v%d" % (20 + i, 20 + i))
    wave_reduce(a, "add", 6, 5, 3)
    e("v_mul_f32 v6, 0x3acccccd, v6")
    e("v_add_f32 v6, 0x3727c5ac, v6")
    e("v_rsq_f32 v6, v6")
    e("s_nop 1")
    for i in range(10):
        e("v_mul_f32 v%d, v%d, v6" % (20 + i, 20 + i))
    for i in range(5):
        e("v_cvt_pk_bf16_f32 v%d, v%d, v%d" % (10 + i, 20 + 2 * i, 21 + 2 * i))
    for i in range(5):
        e("buffer_store_dword v%d, v2, s[%d:%d], s40 offen offset:%d" % (10 + i, dst_srd, dst_srd + 3, 256 * i))


def gen_transpose_section(a, idreg, src_lo, C, R, dst_off, dst_size, row_off, mode):
    e = a.e
    a.srd(8, src_lo, src_lo + 1, 0, R * C * 2)
    a.srd(12, 4, 5, dst_off, dst_size)
    a.sdiv(20, 21, idreg, C // 64, 22)
    e("v_and_b32 v1, 63, v0")
    e("v_lshrrev_b32 v2, 6, v0")
    e("s_lshl_b32 s21, s21, 6")
    e("v_add_u32 v3, s21, v1")
    e("s_lshl_b32 s20, s20, 6")
    e("v_lshlrev_b32 v4, 4, v2")
    e("v_add_u32 v4, s20, v4")
    e("s_mov_b32 s23, %d" % C)
    e("v_mul_lo_u32 v5, v4, s23")
    e("v_add_u32 v5, v5, v3")
    e("v_lshlrev_b32 v5, 1, v5")
    if mode == 0:
        e("v_add_u32 v6, %d, v3" % row_off)
    else:
        e("v_lshrrev_b32 v6, 3, v3")
        e("v_lshlrev_b32 v6, 4, v6")
        e("v_and_b32 v7, 7, v3")
        e("v_add_u32 v6, v6, v7")
        if mode == 2:
            e("v_add_u32 v6, 8, v6")
    e("s_mov_b32 s23, %d" % R)
    e("v_mul_lo_u32 v6, v6, s23")
    e("v_add_u32 v6, v6, v4")
    e("v_lshlrev_b32 v6, 1, v6")
    for i in range(16):
        e("s_mov_b32 s%d, %d" % (24 + i, i * C * 2))
    for i in range(16):
        e("buffer_load_ushort v%d, v5, s[8:11], s%d offen" % (10 + i, 24 + i))
    e("s_waitcnt vmcnt(0)")
    for i in range(8):
        e("v_lshl_or_b32 v%d, v%d, 16, v%d" % (28 + i, 11 + 2 * i, 10 + 2 * i))
    e("buffer_store_dwordx4 v[28:31], v6, s[12:15], 0 offen")
    e("buffer_store_dwordx4 v[32:35], v6, s[12:15], 0 offen offset:16")


PREP_SECT = [
    (960, KA_WQ, 6144, 640, WQKVT, 18432 * 640 * 2, 0, 0),
    (960, KA_WK, 6144, 640, WQKVT, 18432 * 640 * 2, 6144, 0),
    (960, KA_WV, 6144, 640, WQKVT, 18432 * 640 * 2, 12288, 0),
    (960, KA_WO, 640, 6144, WOT, 640 * 6144 * 2, 0, 0),
    (240, KA_WG, 1536, 640, WGUT, 3072 * 640 * 2, 0, 1),
    (240, KA_WU, 1536, 640, WGUT, 3072 * 640 * 2, 0, 2),
    (240, KA_WD, 640, 1536, WDT, 640 * 1536 * 2, 0, 0),
]
PREP_LN = 512
PREP_ZERO = 256
PREP_GRID = sum(s[0] for s in PREP_SECT) + PREP_LN + PREP_ZERO


def gen_prep(a):
    e = a.e
    a.begin("prep_kernel")
    e("s_load_dwordx2 s[4:5], s[0:1], %d" % KA_WS)
    e("s_mov_b32 s3, s2")
    e("s_cmp_lt_u32 s3, %d" % PREP_LN)
    e("s_cbranch_scc1 L_prep_ln")
    e("s_sub_u32 s3, s3, %d" % PREP_LN)
    e("s_cmp_lt_u32 s3, %d" % PREP_ZERO)
    e("s_cbranch_scc1 L_prep_zero")
    e("s_sub_u32 s3, s3, %d" % PREP_ZERO)
    for i, sct in enumerate(PREP_SECT):
        e("s_cmp_lt_u32 s3, %d" % sct[0])
        e("s_cbranch_scc1 L_prep_t%d" % i)
        e("s_sub_u32 s3, s3, %d" % sct[0])
    e("s_endpgm")
    for i, sct in enumerate(PREP_SECT):
        a.lab("L_prep_t%d" % i)
        e("s_load_dwordx2 s[6:7], s[0:1], %d" % sct[1])
        e("s_waitcnt lgkmcnt(0)")
        gen_transpose_section(a, 3, 6, sct[2], sct[3], sct[4], sct[5], sct[6], sct[7])
        e("s_endpgm")
    a.lab("L_prep_zero")
    e("s_waitcnt lgkmcnt(0)")
    a.srd(8, 4, 5, HOP, HOP_SIZE)
    e("s_lshl_b32 s3, s3, 14")
    e("v_lshlrev_b32 v1, 4, v0")
    e("v_mov_b32 v4, 0")
    e("v_mov_b32 v5, 0")
    e("v_mov_b32 v6, 0")
    e("v_mov_b32 v7, 0")
    for i in range(4):
        e("s_add_u32 s20, s3, %d" % (i * 4096))
        e("buffer_store_dwordx4 v[4:7], v1, s[8:11], s20 offen")
    e("s_endpgm")
    a.lab("L_prep_ln")
    e("s_load_dwordx2 s[6:7], s[0:1], %d" % KA_X)
    e("s_waitcnt lgkmcnt(0)")
    a.srd(8, 6, 7, 0, 2048 * 1280)
    a.srd(12, 4, 5, XN, 2048 * 1280)
    e("v_lshrrev_b32 v1, 6, v0")
    e("s_nop 0")
    e("v_readfirstlane_b32 s41, v1")
    e("s_lshl_b32 s3, s3, 2")
    e("s_add_u32 s41, s41, s3")
    gen_ln_rows(a, 8, 12, 41)
    a.end("prep_kernel", 48)


LN2_GRID = 512


def gen_ln2(a):
    e = a.e
    a.begin("ln2_kernel")
    e("s_cmp_ge_u32 s2, %d" % LN2_GRID)
    e("s_cbranch_scc1 L_ln2_end")
    e("s_load_dwordx2 s[4:5], s[0:1], %d" % KA_WS)
    e("s_load_dwordx2 s[6:7], s[0:1], %d" % KA_X)
    e("s_waitcnt lgkmcnt(0)")
    a.srd(8, 4, 5, HB, 2048 * 1280)
    a.srd(12, 4, 5, HN, 2048 * 1280)
    a.srd(16, 6, 7, 0, 2048 * 1280)
    a.srd(20, 4, 5, PARTB, 2 * 2048 * 2560)
    e("v_lshrrev_b32 v1, 6, v0")
    e("s_nop 0")
    e("v_readfirstlane_b32 s41, v1")
    e("s_lshl_b32 s3, s2, 2")
    e("s_add_u32 s41, s41, s3")
    e("v_and_b32 v1, 63, v0")
    e("v_lshlrev_b32 v2, 2, v1")
    e("v_lshlrev_b32 v3, 3, v1")
    e("s_mul_i32 s40, s41, 1280")
    e("s_mul_i32 s42, s41, 2560")
    e("s_add_u32 s43, s42, %d" % (2048 * 2560))
    for i in range(5):
        e("buffer_load_dword v%d, v2, s[16:19], s40 offen offset:%d" % (10 + i, 256 * i))
        e("buffer_load_dwordx2 v[%d:%d], v3, s[20:23], s42 offen offset:%d" % (20 + 2 * i, 21 + 2 * i, 512 * i))
        e("buffer_load_dwordx2 v[%d:%d], v3, s[20:23], s43 offen offset:%d" % (30 + 2 * i, 31 + 2 * i, 512 * i))
    e("s_waitcnt vmcnt(0)")
    for i in range(5):
        e("v_add_f32 v%d, v%d, v%d" % (20 + 2 * i, 20 + 2 * i, 30 + 2 * i))
        e("v_add_f32 v%d, v%d, v%d" % (21 + 2 * i, 21 + 2 * i, 31 + 2 * i))
        e("v_cvt_pk_bf16_f32 v30, v%d, v%d" % (20 + 2 * i, 21 + 2 * i))
        e("v_lshlrev_b32 v%d, 16, v30" % (20 + 2 * i))
        e("v_and_b32 v%d, 0xffff0000, v30" % (21 + 2 * i))
        e("v_lshlrev_b32 v30, 16, v%d" % (10 + i))
        e("v_and_b32 v31, 0xffff0000, v%d" % (10 + i))
        e("v_add_f32 v%d, v%d, v30" % (20 + 2 * i, 20 + 2 * i))
        e("v_add_f32 v%d, v%d, v31" % (21 + 2 * i, 21 + 2 * i))
        e("v_cvt_pk_bf16_f32 v%d, v%d, v%d" % (10 + i, 20 + 2 * i, 21 + 2 * i))
        e("buffer_store_dword v%d, v2, s[8:11], s40 offen offset:%d" % (10 + i, 256 * i))
    gen_ln_rows(a, 8, 12, 41, preloaded=True)
    a.lab("L_ln2_end")
    a.end("ln2_kernel", 48)
```

```python
from common import *

XATTN_GRID = 512
SCALE_HEX = "0x3d93cd3a"
LOG2E_HEX = "0x3fb8aa3b"


def bf16_round(a, v, n, t):
    e = a.e
    for i in range(0, n, 2):
        e("v_cvt_pk_bf16_f32 v%d, v%d, v%d" % (t, v + i, v + i + 1))
        e("v_lshlrev_b32 v%d, 16, v%d" % (v + i, t))
        e("v_and_b32 v%d, 0xffff0000, v%d" % (v + i + 1, t))


def gen_xattn(a):
    e = a.e
    name = "xattn_kernel"
    a.begin(name)
    e("s_cmp_ge_u32 s2, %d" % XATTN_GRID)
    e("s_cbranch_scc1 L_xattn_end")
    e("s_load_dwordx2 s[4:5], s[0:1], %d" % KA_WS)
    e("v_lshrrev_b32 v1, 6, v0")
    e("s_nop 0")
    e("v_readfirstlane_b32 s3, v1")
    e("s_lshl_b32 s20, s2, 2")
    e("s_add_u32 s3, s3, s20")
    e("s_lshr_b32 s20, s3, 5")
    e("s_and_b32 s21, s3, 31")
    e("s_waitcnt lgkmcnt(0)")
    a.srd(8, 4, 5, QB, 2048 * 12288)
    a.srd(12, 4, 5, KB, 2048 * 12288)
    a.srd(16, 4, 5, KM, 64 * 8 * 12288)
    a.srd(24, 4, 5, VT, 64 * 6144 * 64)
    a.srd(28, 4, 5, VM, 64 * 6144 * 16)
    a.srd(32, 4, 5, OX, 2048 * 12288)
    e("v_and_b32 v1, 15, v0")
    e("v_bfe_u32 v2, v0, 4, 2")
    e("v_and_b32 v3, 63, v0")
    e("v_xor_b32 v4, 16, v3")
    e("v_lshlrev_b32 v4, 2, v4")
    e("v_xor_b32 v5, 32, v3")
    e("v_lshlrev_b32 v5, 2, v5")
    e("s_mul_i32 s22, s20, %d" % (32 * 12288))
    e("s_mul_i32 s23, s21, 384")
    e("s_add_u32 s22, s22, s23")
    e("s_mov_b32 s36, 12288")
    e("v_mul_lo_u32 v6, v1, s36")
    e("v_lshl_add_u32 v6, v2, 4, v6")
    e("v_add_u32 v7, %d, v6" % (16 * 12288))
    e("v_and_b32 v8, 7, v1")
    e("v_mul_lo_u32 v8, v8, s36")
    e("v_lshl_add_u32 v8, v2, 4, v8")
    e("s_mul_i32 s37, s20, %d" % (8 * 12288))
    e("s_add_u32 s37, s37, s23")
    vK, vQ = 40, 112
    for ks in range(6):
        e("buffer_load_dwordx4 v[%d:%d], v6, s[12:15], s22 offen offset:%d" % (vK + ks * 4, vK + ks * 4 + 3, ks * 64))
        e("buffer_load_dwordx4 v[%d:%d], v7, s[12:15], s22 offen offset:%d" % (vK + 24 + ks * 4, vK + 24 + ks * 4 + 3, ks * 64))
        e("buffer_load_dwordx4 v[%d:%d], v8, s[16:19], s37 offen offset:%d" % (vK + 48 + ks * 4, vK + 48 + ks * 4 + 3, ks * 64))
        e("buffer_load_dwordx4 v[%d:%d], v6, s[8:11], s22 offen offset:%d" % (vQ + ks * 4, vQ + ks * 4 + 3, ks * 64))
        e("buffer_load_dwordx4 v[%d:%d], v7, s[8:11], s22 offen offset:%d" % (vQ + 24 + ks * 4, vQ + 24 + ks * 4 + 3, ks * 64))
    vS = 16
    for i in range(24):
        e("v_mov_b32 v%d, 0" % (vS + i))
    e("s_mul_i32 s38, s20, %d" % (6144 * 64))
    e("s_mul_i32 s39, s21, %d" % (192 * 64))
    e("s_add_u32 s38, s38, s39")
    e("s_add_u32 s42, s38, 4096")
    e("s_add_u32 s43, s38, 8192")
    e("v_lshlrev_b32 v9, 6, v1")
    e("v_lshl_add_u32 v9, v2, 3, v9")
    e("s_mul_i32 s40, s20, %d" % (6144 * 16))
    e("s_mul_i32 s41, s21, %d" % (192 * 16))
    e("s_add_u32 s40, s40, s41")
    e("v_lshlrev_b32 v10, 4, v1")
    e("v_and_b32 v11, 1, v2")
    e("v_lshl_add_u32 v10, v11, 3, v10")
    e("s_waitcnt vmcnt(0)")
    for ks in range(6):
        for tq in range(2):
            for tk in range(3):
                acc = vS + (tq * 3 + tk) * 4
                e("v_mfma_f32_16x16x32_bf16 v[%d:%d], v[%d:%d], v[%d:%d], v[%d:%d]" % (
                    acc, acc + 3, vK + tk * 24 + ks * 4, vK + tk * 24 + ks * 4 + 3,
                    vQ + tq * 24 + ks * 4, vQ + tq * 24 + ks * 4 + 3, acc, acc + 3))
    vV = 40
    for te in range(12):
        b = vV + te * 6
        so = ("s38", "s42", "s43")[te // 4]
        e("buffer_load_dwordx2 v[%d:%d], v9, s[24:27], %s offen offset:%d" % (b, b + 1, so, (te % 4) * 1024))
        e("buffer_load_dwordx2 v[%d:%d], v9, s[24:27], %s offen offset:%d" % (b + 2, b + 3, so, (te % 4) * 1024 + 32))
        e("buffer_load_dwordx2 v[%d:%d], v10, s[28:31], s40 offen offset:%d" % (b + 4, b + 5, te * 256))
    e("s_nop 7")
    bf16_round(a, vS, 24, 12)
    for i in range(24):
        e("v_mul_f32 v%d, %s, v%d" % (vS + i, SCALE_HEX, vS + i))
    bf16_round(a, vS, 24, 12)
    e("v_lshlrev_b32 v11, 2, v2")
    e("v_sub_u32 v11, v1, v11")
    e("v_mov_b32 v12, 0xce6e6b28")
    for tq in range(2):
        for tk in range(2):
            for r in range(4):
                c = 16 * (tk - tq) + r
                reg = vS + (tq * 3 + tk) * 4 + r
                if c <= -15:
                    continue
                if c > 15:
                    e("v_mov_b32 v%d, v12" % reg)
                    continue
                e("v_cmp_gt_i32 vcc, %d, v11" % c)
                e("s_nop 1")
                e("v_cndmask_b32 v%d, v%d, v12, vcc" % (reg, reg))
    e("v_mov_b32 v12, 0xff800000")
    e("v_cmp_lt_u32 vcc, 1, v2")
    e("s_nop 1")
    for tq in range(2):
        for r in range(4):
            reg = vS + (tq * 3 + 2) * 4 + r
            e("v_cndmask_b32 v%d, v%d, v12, vcc" % (reg, reg))
    for tq in range(2):
        b = vS + tq * 12
        m = 12 + tq
        e("v_max_f32 v%d, v%d, v%d" % (m, b, b + 1))
        for i in range(2, 12):
            e("v_max_f32 v%d, v%d, v%d" % (m, m, b + i))
    for adr in (4, 5):
        e("ds_bpermute_b32 v14, v%d, v12" % adr)
        e("ds_bpermute_b32 v15, v%d, v13" % adr)
        e("s_waitcnt lgkmcnt(0)")
        e("v_max_f32 v12, v12, v14")
        e("v_max_f32 v13, v13, v15")
    for tq in range(2):
        b = vS + tq * 12
        for i in range(12):
            e("v_sub_f32 v%d, v%d, v%d" % (b + i, b + i, 12 + tq))
            e("v_mul_f32 v%d, %s, v%d" % (b + i, LOG2E_HEX, b + i))
            e("v_exp_f32 v%d, v%d" % (b + i, b + i))
    e("s_nop 1")
    for tq in range(2):
        b = vS + tq * 12
        m = 12 + tq
        e("v_add_f32 v%d, v%d, v%d" % (m, b, b + 1))
        for i in range(2, 12):
            e("v_add_f32 v%d, v%d, v%d" % (m, m, b + i))
    for adr in (4, 5):
        e("ds_bpermute_b32 v14, v%d, v12" % adr)
        e("ds_bpermute_b32 v15, v%d, v13" % adr)
        e("s_waitcnt lgkmcnt(0)")
        e("v_add_f32 v12, v12, v14")
        e("v_add_f32 v13, v13, v15")
    e("v_rcp_f32 v12, v12")
    e("v_rcp_f32 v13, v13")
    e("s_nop 1")
    for tq in range(2):
        b = vS + tq * 12
        for i in range(12):
            e("v_mul_f32 v%d, v%d, v%d" % (b + i, b + i, 12 + tq))
    vP = 112
    for tq in range(2):
        b = vS + tq * 12
        for i in range(6):
            e("v_cvt_pk_bf16_f32 v%d, v%d, v%d" % (vP + tq * 8 + i, b + 2 * i, b + 2 * i + 1))
    vO = 128
    for i in range(96):
        e("v_mov_b32 v%d, 0" % (vO + i))
    e("s_waitcnt vmcnt(0)")
    for te in range(12):
        b = vV + te * 6
        for tq in range(2):
            acc = vO + (te * 2 + tq) * 4
            e("v_mfma_f32_16x16x32_bf16 v[%d:%d], v[%d:%d], v[%d:%d], v[%d:%d]" % (acc, acc + 3, b, b + 3, vP + tq * 8, vP + tq * 8 + 3, acc, acc + 3))
    e("s_nop 7")
    for te in range(12):
        b = vV + te * 6
        for tq in range(2):
            acc = vO + (te * 2 + tq) * 4
            e("v_mfma_f32_16x16x16_bf16 v[%d:%d], v[%d:%d], v[%d:%d], v[%d:%d]" % (acc, acc + 3, b + 4, b + 5, vP + tq * 8 + 4, vP + tq * 8 + 5, acc, acc + 3))
    e("s_nop 7")
    e("s_nop 3")
    e("v_mul_lo_u32 v6, v1, s36")
    e("v_lshl_add_u32 v6, v2, 3, v6")
    e("v_add_u32 v7, %d, v6" % (16 * 12288))
    for te in range(12):
        for tq in range(2):
            acc = vO + (te * 2 + tq) * 4
            t = 16 + 2 * ((te * 2 + tq) % 8)
            e("v_cvt_pk_bf16_f32 v%d, v%d, v%d" % (t, acc, acc + 1))
            e("v_cvt_pk_bf16_f32 v%d, v%d, v%d" % (t + 1, acc + 2, acc + 3))
            e("buffer_store_dwordx2 v[%d:%d], v%d, s[32:35], s22 offen offset:%d" % (t, t + 1, 6 + tq, te * 32))
    a.lab("L_xattn_end")
    a.end(name, 224)
```

```python
import sys, os
sys.path.insert(0, os.path.dirname(__file__))
from common import *
from prep import *
from gemm import gen_gemm
from xattn import gen_xattn, XATTN_GRID
from chain import gen_chain, CHAIN_GRID, CHAIN_LDS, CHAIN_BLOCK

a = Asm()
launches = []
gen_prep(a)
launches.append(("prep_kernel", PREP_GRID, 256, 0))
gen_chain(a)
launches.append(("chain_kernel", CHAIN_GRID, CHAIN_BLOCK, CHAIN_LDS))
g, lds = gen_gemm(a, "wo_kernel", OX, 2048 * 12288, 12288, WOT, 640 * 12288, 12288, 6144, 64, 128, 32, 5, dict(kind="part"), ksplit=2)
launches.append(("wo_kernel", g, 256, lds))
gen_ln2(a)
launches.append(("ln2_kernel", LN2_GRID, 256, 0))
g, lds = gen_gemm(a, "ffn1_kernel", HN, 2048 * 1280, 1280, WGUT, 3072 * 1280, 1280, 640, 128, 128, 16, 24, dict(kind="gu"))
launches.append(("ffn1_kernel", g, 256, lds))
g, lds = gen_gemm(a, "ffn2_kernel", GU, 2048 * 3072, 3072, WDT, 640 * 3072, 3072, 1536, 64, 64, 32, 10, dict(kind="resid", res="h", dst="out"))
launches.append(("ffn2_kernel", g, 256, lds))
out = sys.argv[1] if len(sys.argv) > 1 else "cdna_kernels/%s.s" % NAME
open(out, "w").write(a.text(launches))
print("wrote", out, len(a.L), "lines")
```
